```python
import torch

def _softmax(x, axis=-1):
    return torch.softmax(x, dim=axis)
def _gelu(x):
    return torch.nn.functional.gelu(x, approximate="tanh")
def _silu(x):
    return torch.nn.functional.silu(x)
def _sigmoid(x):
    return torch.sigmoid(x)
def _layernorm(x, axis=-1, eps=1e-5):
    m = x.mean(dim=axis, keepdim=True)
    v = x.var(dim=axis, keepdim=True, unbiased=False)
    return (x - m) / torch.sqrt(v + eps)
def _scatter_add(tgt, idx, src, axis=0):
    return tgt.clone().index_add_(axis, idx, src)
def _segment_sum(src, seg, n):
    out = torch.zeros((n,) + src.shape[1:], dtype=src.dtype)
    return out.index_add_(0, seg, src)
def _pad(x, pw):
    flat = tuple(v for pair in reversed(pw) for v in pair)
    return torch.nn.functional.pad(x, flat)

kernel_name = 'standalone__gqa_block_cached__decode'

def setup_inputs():

    _w = (lambda a: (lambda t: t.to(torch.bfloat16) if t.is_floating_point() else t)(torch.as_tensor(a)))
    B, Sq, D = 1, 1, 640
    Hq, Hkv, Sk, Dh = 32, 32, 8192, 192
    assert Hq % Hkv == 0, (Hq, Hkv)
    return {
        "x": _w((lambda *s: torch.randn(*s, dtype=torch.bfloat16) * 0.8)(B, Sq, D)),
        "k_cache": _w((lambda *s: torch.randn(*s, dtype=torch.bfloat16) * 0.8)(B, Hkv, Sk, Dh)),
        "v_cache": _w((lambda *s: torch.randn(*s, dtype=torch.bfloat16) * 0.05)(B, Hkv, Sk, Dh)),
        "wq": _w((lambda *s: torch.randn(*s, dtype=torch.bfloat16) * 0.8)(D, Hq * Dh) * (D ** -0.5)),
        "wo": _w((lambda *s: torch.randn(*s, dtype=torch.bfloat16) * 0.05)(Hq * Dh, D) * ((Hq * Dh) ** -0.5)),
    }

def reference(x, k_cache, v_cache, wq, wo):
    B, Sq, D = x.shape
    Hq, Dh = 32, 192
    Hkv = k_cache.shape[1]
    rep = Hq // Hkv
    q = (lambda x, *d: x.permute(*d))((x @ wq).reshape(B, Sq, Hq, Dh), 0, 2, 1, 3)
    k = (lambda x, n, axis: torch.repeat_interleave(x, n, dim=axis))(k_cache, rep, axis=1)
    v = (lambda x, n, axis: torch.repeat_interleave(x, n, dim=axis))(v_cache, rep, axis=1)
    scores = torch.einsum("bhqd,bhkd->bhqk", q, k) * (Dh ** -0.5)
    p = _softmax(scores, axis=-1)
    o = torch.einsum("bhqk,bhkd->bhqd", p, v)
    return (lambda x, *d: x.permute(*d))(o, 0, 2, 1, 3).reshape(B, Sq, Hq * Dh) @ wo
```

```python
import sys, json, struct
KN='standalone__gqa_block_cached__decode_kernel'
WS_EPOCH= 0x0
WS_QP   = 0x02000
WS_OB1  = 0x50000
WS_ST1  = 0x90000
WS_OB2  = 0x92000
WS_OB1L = WS_OB2+8*5*32*128
WS_PROG = WS_OB1L+256*1024
WS_USED = WS_PROG+32*128
STAMP_OFF=0x10000000
C_SCALE = 0.07216878364870322*1.4426950408889634
def f2u(f): return struct.unpack('<I',struct.pack('<f',f))[0]

def gen(pol='nt', wpol='nt', wgmap='xcd', stamps=False, spin=200000,
        npace=3, A=3, vpace=3, fin_h=0, sleep1=0, st_at=8, vtail=3, vpace2=6, q_first=3, wo_groups=(3,4,5,6), kplan=None,
        part='hil', burst=0, w0pace=3, w0relax=True, n0=2, poll1='dual', dualk=8, poll2p=True, gq=10, st1_delay=6, qk_per=1, pvsplit=True, prio=None, wo_x=True, dbg_nowo=False, epoch_early=True, wopol='nt', wo_k=None, wo_free=False, dbg_woal=None, wo_pf=(11,12,13,14), pf_free=False, fin='h0', denorm=False, pf_x=False, vprio=False, dbg_nowq=False, dbg_xor=0, tlbw=False, sleep2=0, early_b0=False, boost=None):
    NW=8
    G=16; GM=16; D=16
    o=[]
    def e(s): o.append(s)
    def c(s): o.append('; '+s)
    ALL=(1<<64)-1
    def setexec(m):
        if m==ALL: e('s_mov_b64 exec, -1')
        elif m==1: e('s_mov_b64 exec, 1')
        else:
            e(f's_mov_b32 exec_lo, {hex(m&0xffffffff)}'); e(f's_mov_b32 exec_hi, {hex(m>>32)}')
    def lgkm(n): e(f's_waitcnt lgkmcnt({0 if (stamps and stamps!=3) else n})')
    L_Q=0; L_OF=384; L_ML=768; L_F=832; L_C=836; L_C2=840; L_B=844; L_OP=1024; L_WO=L_OP+NW*1024; L_END=L_WO+30720
    S_WG=2; S_W=3
    SRD_K=20; SRD_V=24; SRD_WS=28; SRD_A=32; SRD_B=36; SRD_W=32
    S_G=40; S_MASK=41; S_GST=42; S_X=43
    S_H=44; S_S=45; S_KOFF=46; S_T0=47; S_T1=48; S_T2=49; S_T3=50; S_CNT=51; S_C=52; S_SOFF=53; S_GS=54; S_B=55
    S_TAG=56; S_WMG=57; S_M8=58
    S_ST=60
    S_WSO=100; S_WT=101
    S_QB=36; S_QS=38; S_RET=98
    if stamps==3: stamp_names=['start','end']
    elif stamps==2: stamp_names=['start','k0','k4','k8','k12','k_issued','q_bar','k_done','sm_done','v3','v6','v9','v12','v_done','pub1','got1','got2','end','q_done']
    else: stamp_names=['start','q_acc','q_pub','q_flag','q_done','k_issued','q_bar','k_done','sm_done','v_done','bar2','pub1','got1','bar3','pub2','got2','out','end']
    def stamp(name):
        if not stamps or name not in stamp_names: return
        i=stamp_names.index(name)
        e(f's_memrealtime s[{S_ST+2*i}:{S_ST+2*i+1}]')
    V_L=0; V_OFF=1; V_T=2
    V_M=6; V_LS=7; V_MC=8
    V_P=13; V_QO=V_P+2; V_TL=10; V_TA=11; V_F=12; V_PH=V_T
    V_ACC=(V_P+GM+1)//2*2
    V_Q=V_ACC
    V_RING=V_ACC+24
    NV=V_RING+12*D
    assert NV<=256, NV
    ring=lambda slot: V_RING+12*slot
    T0,T1,T2,T3=V_T,V_T+1,V_T+2,V_T+3
    WSR=f's[{SRD_WS}:{SRD_WS+3}]'
    M8=f's[{S_M8}:{S_M8+1}]'

    for line in """Fused decode attention for gfx950:  q = x@wq ; p = softmax(q k^T / sqrt(192)) ; o = p v ; out = o@wo
One launch, 256 workgroups of 8 waves = 32 heads x 8 key splits, one workgroup per CU.

Per wave: one continuous stream of 1-KiB loads (16 K groups, then 16 V groups; a group = 8 keys = 3 loads of
8 rows x 128 B), at most 3 in flight (s_waitcnt vmcnt pacing keeps the HBM queues short and the dies evenly served).
The 64 waves of a head sweep its keys together (group = 64*round + 8*split + wave).
  QK: v_dot2 against q (bf16, from LDS) + 8-lane DPP reduction; softmax with the exact maximum of the wave's keys;
  PV: v_dot2c with (p,0)/(0,p); the per-wave and per-split maxima and sums are combined exactly in the tail.
q projection: split s multiplies wq rows [80s,80s+80) of its head (waves 1..7), the 8 partials are exchanged.
out projection: split s owns 80 output columns of its head's 192 wo rows (staged in LDS, MFMA in the tail);
the workgroups of head 0 add the 32 head contributions and write d_out.

Hand-offs between workgroups go through d_ws as 16-byte granules {payload, tag}; a granule is valid when it carries
this launch's tag = (epoch word found in d_ws) + constant; the launch stores its tag as the next epoch word at the end.
All hand-off stores are write-through (sc1) and polled with sc1 loads, so they work under any placement; the o
partials are additionally stored with plain stores and polled there first (served by the shared L2 when the splits of
a head sit on one die; every 8th poll reads the write-through copy).  Every poll loop is bounded.""".split('\n'): c(line)
    e(f'; @launch grid=(256,1,1) block=({NW*64},1,1) lds={L_END}')
    e('.amdgcn_target "amdgcn-amd-amdhsa--gfx950"')
    e('.text'); e(f'.globl {KN}'); e('.p2align 8'); e(f'.type {KN},@function'); e(f'{KN}:')
    e(f's_cmp_ge_u32 s{S_WG}, 256'); e('s_cbranch_scc1 L_done')
    if stamps:
        for i in range(S_ST,100,2): e(f's_mov_b32 s{i}, 0')
    stamp('start')
    e(f's_load_dwordx2 s[{SRD_A}:{SRD_A+1}], s[0:1], 24')
    e(f's_load_dwordx2 s[{SRD_B}:{SRD_B+1}], s[0:1], 0')
    e(f's_load_dwordx4 s[4:7], s[0:1], 8')
    e('s_load_dwordx8 s[12:19], s[0:1], 32')
    e(f'v_lshrrev_b32 v{V_T}, 6, v0')
    e(f'v_and_b32 v{V_L}, 63, v0')
    if dbg_xor:
        e(f's_xor_b32 s{S_WG}, s{S_WG}, {dbg_xor&0x3f}'); e(f's_bitcmp1_b32 s{S_WG}, 6'); e('s_cbranch_scc0 L_nx'); e(f's_xor_b32 s{S_WG}, s{S_WG}, {(dbg_xor>>8)&0x3f}'); e('L_nx:')
        e(f's_bitcmp1_b32 s{S_WG}, 7'); e('s_cbranch_scc0 L_nx2'); e(f's_xor_b32 s{S_WG}, s{S_WG}, {(dbg_xor>>16)&0x3f}'); e('L_nx2:')
    if wgmap=='hs':
        e(f's_lshr_b32 s{S_H}, s{S_WG}, 3'); e(f's_and_b32 s{S_S}, s{S_WG}, 7')
    elif wgmap=='xcd':
        c('the 8 splits of a head get block ids that are equal mod 8 (speed only: they share an L2 under round-robin placement)')
        e(f's_and_b32 s{S_H}, s{S_WG}, 7'); e(f's_lshl_b32 s{S_H}, s{S_H}, 2'); e(f's_bfe_u32 s{S_T0}, s{S_WG}, 0x20003')
        e(f's_or_b32 s{S_H}, s{S_H}, s{S_T0}'); e(f's_lshr_b32 s{S_S}, s{S_WG}, 5')
    e(f'v_readfirstlane_b32 s{S_W}, v{V_T}')
    e(f'v_lshrrev_b32 v{V_T}, 3, v{V_L}')
    e(f'v_and_b32 v{V_T+1}, 7, v{V_L}')
    e(f'v_lshlrev_b32 v{V_T+1}, 4, v{V_T+1}')
    e(f'v_mul_u32_u24 v{V_OFF}, 384, v{V_T}')
    e(f'v_add_u32 v{V_OFF}, v{V_OFF}, v{V_T+1}')
    e(f's_lshl_b32 s{S_B}, s{S_H}, 3'); e(f's_or_b32 s{S_B}, s{S_B}, s{S_S}')
    c('key groups (8 keys) of a head: the 64 waves of its 8 splits sweep them together, group = 64*round + 8*split + wave')
    e(f's_mul_i32 s{S_KOFF}, s{S_H}, {8192*384}')
    e(f's_lshl_b32 s{S_T0}, s{S_S}, 3'); e(f's_add_u32 s{S_T0}, s{S_T0}, s{S_W}')
    e(f's_mul_i32 s{S_T0}, s{S_T0}, 3072')
    e(f's_add_u32 s{S_KOFF}, s{S_KOFF}, s{S_T0}')
    def srd(base, ptr, size):
        e(f's_mov_b32 s{base}, s{ptr}'); e(f's_mov_b32 s{base+1}, s{ptr+1}'); e(f's_mov_b32 s{base+2}, {size}'); e(f's_mov_b32 s{base+3}, 0x20000')
    def srd_tail(base,size):
        e(f's_mov_b32 s{base+2}, {size}'); e(f's_mov_b32 s{base+3}, 0x20000')
    srd_tail(SRD_K,100663296); srd_tail(SRD_A,640*6144*2); srd_tail(SRD_B,1280)
    c('lane and scalar offsets of this wave\'s share of the q projection (wq rows 80s + 8g .. +7, g = wave-1)')
    e(f'v_lshrrev_b32 v{T0}, 3, v{V_L}')
    e(f'v_lshlrev_b32 v{T2}, 1, v{T0}')
    e(f'v_mul_u32_u24 v{T3}, 12288, v{T0}')
    e(f'v_and_b32 v{T1}, 7, v{V_L}')
    e(f'v_lshl_add_u32 v{T3}, v{T1}, 4, v{T3}')
    e(f's_mul_i32 s{S_T0}, s{S_S}, 10'); e(f's_add_u32 s{S_T0}, s{S_T0}, s{S_W}'); e(f's_sub_u32 s{S_T0}, s{S_T0}, 1')
    e(f's_lshl_b32 s{S_T1}, s{S_T0}, 4')
    e(f's_mul_i32 s{S_T2}, s{S_T0}, {8*12288}'); e(f's_mul_i32 s{S_T3}, s{S_H}, 384'); e(f's_add_u32 s{S_T2}, s{S_T2}, s{S_T3}')
    if prio=='young':
        e(f's_cmp_ge_u32 s{S_W}, 4'); e('s_cbranch_scc0 L_noprio'); e('s_setprio 1'); e('L_noprio:')
    elif prio=='w0':
        e(f's_cmp_eq_u32 s{S_W}, 0'); e('s_cbranch_scc0 L_noprio'); e('s_setprio 1'); e('L_noprio:')
    elif prio=='w0y':
        e(f's_sub_u32 s{S_X}, s{S_W}, 1'); e(f's_cmp_ge_u32 s{S_X}, 3'); e('s_cbranch_scc0 L_noprio'); e('s_setprio 1'); e('L_noprio:')
    e(f's_cmp_eq_u32 s{S_W}, 0')
    e('s_waitcnt lgkmcnt(0)')
    e(f's_mov_b32 s{SRD_K}, s4'); e(f's_mov_b32 s{SRD_K+1}, s5')
    e('s_cbranch_scc1 L_w0')
    def late_setup():
        e(f's_load_dword s{S_TAG}, s[18:19], {WS_EPOCH}')
        srd(SRD_V,6,100663296); srd(SRD_WS,18,WS_USED)
        e(f's_mov_b32 s{S_C}, {hex(f2u(C_SCALE))}')
        e(f's_mov_b32 s{S_M8}, 0xff00ff00'); e(f's_mov_b32 s{S_M8+1}, 0xff00ff00')
    def wo_setup():
        c('wo slice [192 rows][80 cols] -> LDS, packed rows of 160 B; 30 DMA instructions of 1 KiB')
        srd(SRD_W,12,6144*640*2)
        e(f's_mul_i32 s{S_WSO}, s{S_H}, {192*1280}'); e(f's_mul_i32 s{S_WT}, s{S_S}, {128 if dbg_woal=="line" else (30720 if dbg_woal=="rows" else 160)}'); e(f's_add_u32 s{S_WSO}, s{S_WSO}, s{S_WT}')
        e(f's_mov_b32 s{S_WMG}, {0x1999999a}')
    woc=[0]
    def wo_one(i,t0,t1,t2,pace,st):
        lab=None
        if 8*i+7>=30 and wo_x:
            woc[0]+=1; lab=f'L_wo{woc[0]}'
            e(f's_and_b32 s{S_WT}, s{S_W}, 3'); e(f's_cmp_eq_u32 s{S_WT}, 0'); e(f's_cbranch_scc1 {lab}')
            e(f's_lshr_b32 s{S_WT}, s{S_W}, 2'); e(f's_sub_u32 s{S_WT}, s{S_W}, s{S_WT}'); e(f's_add_u32 s{S_WT}, s{S_WT}, 23'); e(f's_lshl_b32 s{S_WT}, s{S_WT}, 6')
        else:
            if 8*i+7>=30:
                woc[0]+=1; lab=f'L_wo{woc[0]}'
                e(f's_cmp_ge_u32 s{S_W}, {30-8*i}'); e(f's_cbranch_scc1 {lab}')
            e(f's_lshl_b32 s{S_WT}, s{S_W}, 6'); e(f's_add_u32 s{S_WT}, s{S_WT}, {512*i}')
        e(f'v_add_u32 v{t0}, s{S_WT}, v{V_L}')
        if dbg_woal=='line':
            e(f'v_lshrrev_b32 v{t1}, 3, v{t0}'); e(f'v_and_b32 v{t2}, 7, v{t0}')
            e(f'v_mul_u32_u24 v{t1}, 1280, v{t1}')
            e(f'v_lshl_add_u32 v{t1}, v{t2}, 4, v{t1}')
        elif dbg_woal=='rows':
            e(f'v_lshlrev_b32 v{t1}, 4, v{t0}')
        else:
            e(f'v_mul_hi_u32 v{t1}, v{t0}, s{S_WMG}')
            e(f'v_mul_u32_u24 v{t2}, 10, v{t1}')
            e(f'v_sub_u32 v{t2}, v{t0}, v{t2}')
            e(f'v_mul_u32_u24 v{t1}, 1280, v{t1}')
            e(f'v_lshl_add_u32 v{t1}, v{t2}, 4, v{t1}')
        e(f's_lshl_b32 s{S_WT}, s{S_WT}, 4'); e(f's_add_u32 m0, s{S_WT}, {L_WO}')
        if not wo_free: e(f's_waitcnt vmcnt({pace-1})')
        else: e('s_nop 0')
        wo_load(t1)
        if lab:
            e(f'{lab}:'); st.other('woopt')
        else: st.other('wo')
    def wo_load(t1):
        e(f'buffer_load_dwordx4 v{t1}, s[{SRD_W}:{SRD_W+3}], s{S_WSO} offen {wpol if wopol is None else wopol} lds')
    def reduce24(dst):
        e('s_nop 2')
        for j in range(3):
            for x_ in range(4): e(f'v_permlane32_swap_b32 v{V_ACC+8*j+x_}, v{V_ACC+8*j+x_+4}')
        for j in range(3):
            for x_ in range(4): e(f'v_add_f32 v{V_ACC+8*j+x_}, v{V_ACC+8*j+x_}, v{V_ACC+8*j+x_+4}')
        e('s_nop 1')
        for j in range(3):
            for x_ in range(2): e(f'v_permlane16_swap_b32 v{V_ACC+8*j+x_}, v{V_ACC+8*j+x_+2}')
        for j in range(3):
            for x_ in range(2): e(f'v_add_f32 v{V_ACC+8*j+x_}, v{V_ACC+8*j+x_}, v{V_ACC+8*j+x_+2}')
        e('s_nop 1')
        for j in range(3):
            for x_ in range(2):
                e(f'v_add_f32_dpp v{V_ACC+8*j+x_}, v{V_ACC+8*j+x_}, v{V_ACC+8*j+x_} row_ror:8 row_mask:0xf bank_mask:0xf')
        e(f'v_cndmask_b32 v{dst}, v{V_ACC}, v{V_ACC+9}, {M8}')
        e(f'v_cndmask_b32 v{dst+1}, v{V_ACC+1}, v{V_ACC+16}, {M8}')
        e(f'v_cndmask_b32 v{dst+2}, v{V_ACC+8}, v{V_ACC+17}, {M8}')
    def check_tags(regs, t0, t1, t2):
        regs=list(regs)
        e(f'v_xor_b32 v{t0}, s{S_TAG}, v{regs[0]}'); regs=regs[1:]
        while len(regs)>=2:
            e(f'v_xor_b32 v{t1}, s{S_TAG}, v{regs[0]}'); e(f'v_xor_b32 v{t2}, s{S_TAG}, v{regs[1]}'); e(f'v_or3_b32 v{t0}, v{t0}, v{t1}, v{t2}'); regs=regs[2:]
        if regs: e(f'v_xor_b32 v{t1}, s{S_TAG}, v{regs[0]}'); e(f'v_or_b32 v{t0}, v{t0}, v{t1}')
        e(f'v_cmp_ne_u32 vcc, 0, v{t0}')
    def lds_addr_bf16x3(pa, sa, t):
        e(f'v_and_b32 v{pa}, 7, v{V_L}'); e(f'v_lshlrev_b32 v{pa}, 4, v{pa}')
        e(f'v_lshrrev_b32 v{t}, 5, v{V_L}'); e(f'v_lshl_add_u32 v{pa}, v{t}, 3, v{pa}')
        e(f'v_bfe_u32 v{t}, v{V_L}, 4, 1'); e(f'v_lshl_add_u32 v{pa}, v{t}, 2, v{pa}')
        e(f'v_bfe_u32 v{t}, v{V_L}, 3, 1')
        e(f'v_lshl_add_u32 v{sa}, v{t}, 1, v{pa}')
        e(f'v_lshl_add_u32 v{pa}, v{t}, 8, v{pa}')
    def lds_put_bf16x3(g, lds_off, pa, sa, a, b, d):
        e(f'v_cndmask_b32 v{a}, v{g}, v{g+1}, {M8}')
        e(f'v_cndmask_b32 v{b}, v{g+1}, v{g+2}, {M8}')
        e(f'v_cndmask_b32 v{d}, v{g+2}, v{g}, {M8}')
        e(f'v_cvt_pk_bf16_f32 v{a}, v{a}, v{b}')
        e(f'v_cvt_pk_bf16_f32 v{d}, v{d}, v{d}')
        e(f'ds_write_b32 v{pa}, v{a} offset:{lds_off}')
        e(f'ds_write_b16 v{sa}, v{d} offset:{lds_off+128}')
    def maxtree(regs,dst):
        regs=list(regs)
        if len(regs)==2:
            e(f'v_max_f32 v{dst}, v{regs[0]}, v{regs[1]}'); return
        e(f'v_max3_f32 v{dst}, v{regs[0]}, v{regs[1]}, v{regs[2]}'); regs=regs[3:]
        while len(regs)>=2:
            e(f'v_max3_f32 v{dst}, v{dst}, v{regs[0]}, v{regs[1]}'); regs=regs[2:]
        if regs: e(f'v_max_f32 v{dst}, v{dst}, v{regs[0]}')
    def allred(reg,tmp,op):
        e('s_nop 1')
        e(f'{op}_dpp v{reg}, v{reg}, v{reg} row_ror:8 row_mask:0xf bank_mask:0xf')
        e(f'v_mov_b32 v{tmp}, v{reg}'); e('s_nop 1')
        e(f'v_permlane16_swap_b32 v{reg}, v{tmp}')
        e(f'{op} v{reg}, v{reg}, v{tmp}')
        e(f'v_mov_b32 v{tmp}, v{reg}'); e('s_nop 1')
        e(f'v_permlane32_swap_b32 v{reg}, v{tmp}')
        e(f'{op} v{reg}, v{reg}, v{tmp}')
    def red8(reg,op):
        for ctl in ('quad_perm:[1,0,3,2]','quad_perm:[2,3,0,1]','row_half_mirror'):
            e('s_nop 1')
            e(f'{op}_dpp v{reg}, v{reg}, v{reg} {ctl} row_mask:0xf bank_mask:0xf')
    def spin_end(label,slp=0):
        if slp: e(f's_sleep {slp}')
        e(f's_sub_u32 s{S_CNT}, s{S_CNT}, 1'); e(f's_cmp_lg_u32 s{S_CNT}, 0'); e(f's_cbranch_scc1 {label}')
    def box_load(base, s_, s0, s1, voff):
        sr,of=(s0,1024*s_) if s_<4 else (s1,1024*(s_-4))
        e(f'buffer_load_dwordx4 v[{base+4*s_}:{base+4*s_+3}], v{voff}, {WSR}, s{sr} offen offset:{of} sc1')
    def qk_dots(r,t,u,pend=()):
        dots=[f'v_dot2_f32_bf16 v{t}, v{r}, v{V_Q}, 0', f'v_dot2_f32_bf16 v{u}, v{r+1}, v{V_Q+1}, 0']
        for k in range(2,12):
            dots.append(f'v_dot2_f32_bf16 v{t if k%2==0 else u}, v{r+k}, v{V_Q+k}, v{t if k%2==0 else u}')
        pi=0
        for k,dd in enumerate(dots):
            e(dd)
            if k in (2,5,8,11) and pi<len(pend): e(pend[pi]); pi+=1
    def red_steps(t,dst):
        u=t+1
        return [f'v_add_f32 v{t}, v{t}, v{u}',
                f'v_add_f32_dpp v{t}, v{t}, v{t} quad_perm:[1,0,3,2] row_mask:0xf bank_mask:0xf',
                f'v_add_f32_dpp v{t}, v{t}, v{t} quad_perm:[2,3,0,1] row_mask:0xf bank_mask:0xf',
                f'v_add_f32_dpp v{dst}, v{t}, v{t} row_half_mirror row_mask:0xf bank_mask:0xf']
    def pv(r,plo,phi):
        for k in range(12):
            j,d=divmod(k,4)
            e(f'v_dot2c_f32_bf16 v{V_ACC+8*j+2*d}, v{r+k}, v{plo}')
            e(f'v_dot2c_f32_bf16 v{V_ACC+8*j+2*d+1}, v{r+k}, v{phi}')

    optl=[0]; S_BOOST=39; V_BM=V_T+6
    class Stream:
        def __init__(s,G,stride): s.G=G; s.stride=stride; s.seq=[]; s.consumed=set()
        def slot(s,ph,g): return (g if ph=='K' else s.G+g)%D
        def reg(s,ph,g): return ring(s.slot(ph,g))
        def can_issue(s,ph,g):
            i=(g if ph=='K' else s.G+g)-D
            return i<0 or (('K',i) if i<s.G else ('V',i-s.G)) in s.consumed
        def head(s,ph,g):
            sreg = S_SOFF if ph=='K' else S_GS
            if g==0: e(f's_mov_b32 s{sreg}, s{S_KOFF}')
            else: e(f's_add_u32 s{sreg}, s{sreg}, {s.stride}')
        def load(s,ph,g,j,pace=None,alt=None):
            sreg = S_SOFF if ph=='K' else S_GS
            sr=SRD_K if ph=='K' else SRD_V
            r=s.reg(ph,g)
            assert s.can_issue(ph,g), (ph,g)
            if alt is not None:
                optl[0]+=1
                e(f's_cmp_lg_u32 s{S_BOOST}, 0'); e(f's_waitcnt vmcnt({s.pace_count(alt)})'); e(f's_cbranch_scc1 L_bo{optl[0]}')
                e(f's_waitcnt vmcnt({s.pace_count(pace)})'); e(f'L_bo{optl[0]}:')
            elif pace is not None: e(f's_waitcnt vmcnt({s.pace_count(pace)})')
            e(f'buffer_load_dwordx4 v[{r+4*j}:{r+4*j+3}], v{V_OFF}, s[{sr}:{sr+3}], s{sreg} offen offset:{128*j} {pol}')
            s.seq.append((ph,g,j))
        def issue(s,ph,g,pace=None):
            s.head(ph,g)
            for j in range(3): s.load(ph,g,j,pace)
        def other(s,name): s.seq.append((name,0,0))
        def pace_count(s,pace):
            if not (wo_free or pf_free): return pace-1
            kv=[k for k,x in enumerate(s.seq) if x[0] in ('K','V')]
            if len(kv)<pace: return pace-1
            idx=kv[-pace]
            side=sum(1 for x in s.seq[idx+1:] if x[0] in ('wo','woopt'))
            return min(63,pace-1+side)
        def younger(s,key):
            idx=max(k for k,x in enumerate(s.seq) if x[:len(key)]==key)
            return sum(1 for x in s.seq[idx+1:] if x[0]!='woopt')
        def wait(s,key):
            n=s.younger(key); assert n<=63
            e(f's_waitcnt vmcnt({n})')

    S_F=4
    CH=(6,8)
    def stream_body(st, w0, g_start, kstep=None, qpoint=None):
        G=st.G
        SR=V_M
        def qk_block(g):
            st.wait(('K',g))
            t=CH[g%2]; tp=CH[(g+1)%2]
            qk_dots(st.reg('K',g),t,t+1, red_steps(tp,V_P+g-1) if g>0 else ())
            st.consumed.add(('K',g))
        def sm_a():
            e('s_nop 2')
            for s_ in red_steps(CH[(G-1)%2], V_P+G-1): e(s_); e('s_nop 1')
            stamp('k_done')
            maxtree(range(V_P,V_P+G),V_M)
            allred(V_M,T1,'v_max_f32')
            e(f'v_mul_f32 v{V_MC}, s{S_C}, v{V_M}')
        def sm_b():
            for g in range(G): e(f'v_fma_f32 v{V_P+g}, v{V_P+g}, s{S_C}, -v{V_MC}')
            for g in range(G): e(f'v_exp_f32 v{V_P+g}, v{V_P+g}')
        def sm_c():
            e(f'v_add_f32 v{V_LS}, v{V_P}, v{V_P+1}')
            for g in range(2,G): e(f'v_add_f32 v{V_LS}, v{V_LS}, v{V_P+g}')
            for g in range(G): e(f'v_cvt_pk_bf16_f32 v{V_P+g}, v{V_P+g}, 0')
            allred(V_LS,T1,'v_add_f32')
            c('wave statistics {max, sum} -> LDS, then count this wave in')
            e(f's_lshl_b32 s{S_T0}, s{S_W}, 3'); e(f'v_mov_b32 v{T3}, s{S_T0}')
            e(f'ds_write_b64 v{T3}, v[{V_M}:{V_LS}] offset:{L_ML}')
            e(f'v_mov_b32 v{T2}, 0'); e(f'v_mov_b32 v{T1}, 1')
            e('s_waitcnt lgkmcnt(0)')
            setexec(1)
            e(f'ds_add_u32 v{T2}, v{T1} offset:{L_C}')
            setexec(ALL)
        def sm_d():
            if vprio:
                lab=f'L_vp{int(w0)}'
                e(f's_cmp_ge_u32 s{S_W}, 4'); e(f's_cbranch_scc0 {lab}'); e('s_setprio 1'); e(f'{lab}:')
            if not wo_k: wo_setup()
            for i in range(24): e(f'v_mov_b32 v{V_ACC+i}, 0')
            e(f'v_lshlrev_b32 v{V_TL}, 4, v{V_L}')
            e(f's_lshl_b32 s{S_T0}, s{S_W}, 10'); e(f'v_add_u32 v{V_TA}, s{S_T0}, v{V_TL}')
            stamp('sm_done')
        def pv_block(g):
            st.wait(('V',g))
            e(f'v_lshlrev_b32 v{T0}, 16, v{V_P+g}')
            pv(st.reg('V',g),V_P+g,T0)
            st.consumed.add(('V',g))
            stamp(f'v{g}')
        def pv_part(g,j):
            st.wait(('V',g,j))
            if j==0: e(f'v_lshlrev_b32 v{V_PH}, 16, v{V_P+g}')
            r=st.reg('V',g)
            for d in range(4):
                e(f'v_dot2c_f32_bf16 v{V_ACC+8*j+2*d}, v{r+4*j+d}, v{V_P+g}')
                e(f'v_dot2c_f32_bf16 v{V_ACC+8*j+2*d+1}, v{r+4*j+d}, v{V_PH}')
            if j==2:
                st.consumed.add(('V',g)); stamp(f'v{g}')
        def st1():
            c('workgroup statistics: wait for the 8 waves, combine, publish {max, sum, 0, tag}; keep the per-wave factor')
            e(f'v_mov_b32 v{T2}, 0')
            e(f's_mov_b32 s{S_CNT}, {spin}')
            e('L_c8:')
            e(f'ds_read_b32 v{T1}, v{T2} offset:{L_C}')
            e('s_waitcnt lgkmcnt(0)')
            e(f'v_cmp_gt_u32 vcc, 8, v{T1}')
            e('s_cbranch_vccz L_c8ok')
            spin_end('L_c8')
            e('L_c8ok:')
            e(f'v_and_b32 v{T1}, 7, v{V_L}'); e(f'v_lshlrev_b32 v{T1}, 3, v{T1}')
            e(f'ds_read_b64 v[{SR+2}:{SR+3}], v{T1} offset:{L_ML}')
            e(f's_lshl_b32 s{S_T2}, s{S_B}, 4'); e(f's_add_u32 s{S_T2}, s{S_T2}, {WS_ST1}')
            e('s_waitcnt lgkmcnt(0)')
            e(f'v_mov_b32 v{SR}, v{SR+2}')
            red8(SR,'v_max_f32')
            e(f'v_mul_f32 v{T1}, s{S_C}, v{SR}')
            e(f'v_fma_f32 v{V_F}, v{SR+2}, s{S_C}, -v{T1}')
            e(f'v_exp_f32 v{V_F}, v{V_F}')
            e('s_nop 0')
            e(f'v_mul_f32 v{SR+1}, v{V_F}, v{SR+3}')
            red8(SR+1,'v_add_f32')
            e(f'v_mov_b32 v{SR+2}, 0'); e(f'v_mov_b32 v{SR+3}, s{S_TAG}')
            setexec(1)
            e(f'buffer_store_dwordx4 v[{SR}:{SR+3}], off, {WSR}, s{S_T2} sc1')
            setexec(ALL)
            st.other('ststore')
            e('s_nop 1')
        def stats_load():
            e(f'v_and_b32 v{T1}, 7, v{V_L}'); e(f'v_lshlrev_b32 v{T1}, 4, v{T1}')
            e(f's_lshl_b32 s{S_T2}, s{S_H}, 7'); e(f's_add_u32 s{S_T2}, s{S_T2}, {WS_ST1}')
            e(f'buffer_load_dwordx4 v[{SR}:{SR+3}], v{T1}, {WSR}, s{S_T2} offen sc1')
        def st2():
            c('scale of each wave partial: exp2((max_w - max_head) c) / sum_head')
            st.wait(('stload',))
            e(f's_mov_b32 s{S_CNT}, {spin}')
            e('L_stchk:')
            e(f'v_cmp_ne_u32 vcc, s{S_TAG}, v{SR+3}')
            e('s_cbranch_vccz L_stok')
            stats_load()
            e('s_waitcnt vmcnt(0)')
            spin_end('L_stchk')
            e('L_stok:')
            e(f'v_mov_b32 v{T1}, v{SR}')
            red8(T1,'v_max_f32')
            e(f'v_mul_f32 v{T1}, s{S_C}, v{T1}')
            e(f'v_fma_f32 v{T1}, v{SR}, s{S_C}, -v{T1}')
            e(f'v_exp_f32 v{T1}, v{T1}')
            e('s_nop 0')
            e(f'v_mul_f32 v{T2}, v{T1}, v{SR+1}')
            red8(T2,'v_add_f32')
            e(f'v_rcp_f32 v{T2}, v{T2}')
            e('s_nop 0')
            e(f'v_mul_f32 v{T1}, v{T1}, v{T2}')
            e('s_nop 0')
            e(f'v_readlane_b32 s{S_G}, v{T1}, s{S_S}')
            e('s_nop 1')
            e(f'v_mul_f32 v{V_F}, s{S_G}, v{V_F}')
            e('s_nop 0')
            for w in range(NW): e(f'v_readlane_b32 s{S_F+w}, v{V_F}, {w}')
        ops=[]
        for g in range(g_start,G):
            ops+=[('K',g,j) for j in range(3)]
            if wo_k and g in wo_k: ops.append(('WO',wo_k.index(g),0))
            if wo_pf and g in wo_pf: ops.append(('PF',wo_pf.index(g),0))
        for g in range(G):
            ops+=[('V',g,j) for j in range(3)]
            if not wo_k and g in wo_groups: ops.append(('WO',wo_groups.index(g),0))
            if w0 and g==st_at: ops.append(('ST',0,0))
            if boost and w0 and g==boost[0]: ops.append(('PM',0,0))
        pm_issued=False; pm_done=False; bf_read=False; bf_got=False
        q_ready=False; nqk=0; sm=0; npv=0; npp=0; pvn=2; st1_done=False; since_smc=None; st_issued=False; st2_done=False
        cur=npace
        def issued(ph,g): return any(x==(ph,g,2) for x in st.seq)
        for k,(kind,g,j) in enumerate(ops):
            if kind=='K':
                if j==0:
                    if kstep: kstep('pre',g)
                    st.head('K',g)
                pc=(w0pace if w0 else npace)
                if w0 and w0relax and g==q_first+1: pc+=8
                st.load('K',g,j,pc); cur=npace
                if j==2:
                    if kstep: kstep('post',g)
                    stamp(f'k{g}')
                    if g==gq:
                        qpoint()
                        e(f'v_and_b32 v{T0}, 7, v{V_L}'); e(f'v_lshlrev_b32 v{T0}, 4, v{T0}')
                        for jj in range(3): e(f'ds_read_b128 v[{V_Q+4*jj}:{V_Q+4*jj+3}], v{T0} offset:{L_Q+128*jj}')
                        e('s_waitcnt lgkmcnt(0)')
                        stamp('q_bar')
                        q_ready=True
                        continue
            elif kind=='V':
                if j==0:
                    assert st.can_issue('V',g), g
                    st.head('V',g)
                pc=vpace2 if g>=G-vtail else vpace
                alt=None
                if boost and boost[0]+3<=g<G-vtail:
                    if not bf_got:
                        e('s_waitcnt lgkmcnt(0)'); e(f'v_readfirstlane_b32 s{S_BOOST}, v{V_BM}'); e('s_nop 3'); bf_got=True
                    alt=boost[2]
                st.load('V',g,j,pc,alt); cur=pc if alt is None else alt
                if boost and g==boost[0]+2 and j==1:
                    e(f'v_mov_b32 v{T1}, 0'); e(f'ds_read_b32 v{V_BM}, v{T1} offset:{L_B}'); bf_read=True
            elif kind=='PF':
                if g==0:
                    c('L2 prefetch of the wo rows of this head: each split fetches 24 whole rows (contiguous); the slices are read later')
                    srd(SRD_W,12,6144*640*2)
                    e(f's_mul_i32 s{S_WSO}, s{S_H}, {192*1280}'); e(f's_mul_i32 s{S_WT}, s{S_S}, 30720'); e(f's_add_u32 s{S_WSO}, s{S_WSO}, s{S_WT}')
                lab=None
                if g==3 and pf_x:
                    lab=f'L_pf{int(w0)}'
                    e(f's_and_b32 s{S_WT}, s{S_W}, 3'); e(f's_cmp_eq_u32 s{S_WT}, 0'); e(f's_cbranch_scc1 {lab}')
                    e(f's_lshr_b32 s{S_WT}, s{S_W}, 2'); e(f's_sub_u32 s{S_WT}, s{S_W}, s{S_WT}'); e(f's_add_u32 s{S_WT}, s{S_WT}, 23'); e(f's_lshl_b32 s{S_WT}, s{S_WT}, 10')
                else:
                    if g==3:
                        lab=f'L_pf{int(w0)}'
                        e(f's_cmp_ge_u32 s{S_W}, 6'); e(f's_cbranch_scc1 {lab}')
                    e(f's_lshl_b32 s{S_WT}, s{S_W}, 10'); e(f's_add_u32 s{S_WT}, s{S_WT}, {8192*g}')
                e(f'v_lshlrev_b32 v{T1}, 4, v{V_L}'); e(f'v_add_u32 v{T1}, s{S_WT}, v{T1}')
                if not pf_free: e(f's_waitcnt vmcnt({npace-1})')
                e(f'buffer_load_dwordx4 v[{V_ACC+12}:{V_ACC+15}], v{T1}, s[{SRD_W}:{SRD_W+3}], s{S_WSO} offen')
                if lab:
                    e(f'{lab}:'); st.other('woopt')
                else: st.other('wo')
            elif kind=='WO':
                assert sm>=4 or wo_k
                if wo_k and g==0: wo_setup()
                if not dbg_nowo: wo_one(g,T1,T2,T3,vpace,st)
            elif kind=='PM':
                c('progress marker (speed hint): how many of the 8 workgroups with this split and head&3 passed this point earlier?')
                e(f's_and_b32 s{S_T2}, s{S_H}, 3'); e(f's_lshl_b32 s{S_T3}, s{S_S}, 2'); e(f's_or_b32 s{S_T2}, s{S_T2}, s{S_T3}'); e(f's_lshl_b32 s{S_T2}, s{S_T2}, 7'); e(f's_add_u32 s{S_T2}, s{S_T2}, {WS_PROG}')
                e(f'v_and_b32 v{T1}, 7, v{V_L}'); e(f'v_lshlrev_b32 v{T1}, 2, v{T1}')
                e(f'buffer_load_dword v{V_BM+1}, v{T1}, {WSR}, s{S_T2} offen sc1'); st.other('pmload')
                e(f's_lshr_b32 s{S_T3}, s{S_H}, 2'); e(f's_lshl_b32 s{S_T3}, s{S_T3}, 2'); e(f's_add_u32 s{S_T2}, s{S_T2}, s{S_T3}')
                e(f'v_mov_b32 v{T1}, s{S_TAG}')
                setexec(1)
                e(f'buffer_store_dword v{T1}, off, {WSR}, s{S_T2} sc1'); st.other('pmstore')
                setexec(ALL)
                pm_issued=True
            else:
                assert st1_done
                stats_load(); st.other('stload'); st_issued=True
            if since_smc is not None: since_smc+=1
            if q_ready and nqk<G:
                n=0
                while n<qk_per and nqk<G and issued('K',nqk) and st.younger(('K',nqk))>=npace:
                    qk_block(nqk); nqk+=1; n+=1
            elif nqk==G and sm<4:
                (sm_a,sm_b,sm_c,sm_d)[sm](); sm+=1
                if sm==3: since_smc=0
            elif sm==4:
                if w0 and not st1_done and since_smc>=st1_delay:
                    st1(); st1_done=True
                elif w0 and pm_issued and not pm_done and st.younger(('pmload',))>=vpace+1:
                    st.wait(('pmload',))
                    e(f'v_cmp_eq_u32 vcc, s{S_TAG}, v{V_BM+1}')
                    e('s_nop 1')
                    e(f's_and_b32 s{S_T2}, vcc_lo, 0xff'); e(f's_bcnt1_i32_b32 s{S_T2}, s{S_T2}')
                    e(f's_cmp_ge_u32 s{S_T2}, {boost[1]}'); e(f's_cselect_b32 s{S_T2}, 1, 0')
                    e(f'v_mov_b32 v{T1}, 0'); e(f'v_mov_b32 v{T2}, s{S_T2}')
                    e(f'ds_write_b32 v{T1}, v{T2} offset:{L_B}')
                    pm_done=True
                elif w0 and st_issued and not st2_done and st.younger(('stload',))>=vpace+3:
                    st2(); st2_done=True
                elif not pvsplit and npv<G and issued('V',npv) and st.younger(('V',npv))>=cur:
                    pv_block(npv); npv+=1
                elif pvsplit:
                    n=0
                    while npp<3*G and (('V',npp//3,npp%3) in st.seq) and st.younger(('V',npp//3,npp%3))>=cur and n<pvn:
                        pv_part(npp//3,npp%3); npp+=1; n+=1
                        if st.younger(('V',(npp-1)//3,(npp-1)%3))<cur+2: break
        assert nqk==G and sm==4
        if w0 and not st2_done: st2(); st2_done=True
        if pvsplit:
            while npp<3*G:
                pv_part(npp//3,npp%3); npp+=1
        else:
            while npv<G:
                pv_block(npv); npv+=1
        e(f'v_mov_b32 v{V_T+7}, s{S_TAG}')
        stamp('v_done')

    import copy
    WA=ring(14); WB=ring(15); XA=V_P; XB=V_P+1
    e(f'buffer_load_ushort v{XA}, v{T2}, s[{SRD_B}:{SRD_B+3}], s{S_T1} offen')
    for j in range(0 if dbg_nowq else 3): e(f'buffer_load_dwordx4 v[{WA+4*j}:{WA+4*j+3}], v{T3}, s[{SRD_A}:{SRD_A+3}], s{S_T2} offen offset:{128*j} {wpol}')
    e(f's_cmp_le_u32 s{S_W}, 3'); e('s_cbranch_scc0 L_noq2a')
    e(f's_add_u32 s{S_T1}, s{S_T1}, {7*16}'); e(f's_add_u32 s{S_T2}, s{S_T2}, {7*8*12288}')
    e(f'buffer_load_ushort v{XB}, v{T2}, s[{SRD_B}:{SRD_B+3}], s{S_T1} offen')
    for j in range(0 if dbg_nowq else 3): e(f'buffer_load_dwordx4 v[{WB+4*j}:{WB+4*j+3}], v{T3}, s[{SRD_A}:{SRD_A+3}], s{S_T2} offen offset:{128*j} {wpol}')
    e('L_noq2a:')
    if early_b0: e('s_barrier')
    s1=Stream(G,64*3072); s1.nk=G
    s1.issue('K',0,None if burst else npace)
    late_setup()
    for i in range(24): e(f'v_mov_b32 v{V_ACC+i}, 0')
    def wq_consume(r,x):
        e(f'v_lshlrev_b32 v{T0}, 16, v{x}')
        for i in range(12):
            j,d=divmod(i,4)
            e(f'v_dot2c_f32_bf16 v{V_ACC+8*j+2*d}, v{r+i}, v{x}')
            e(f'v_dot2c_f32_bf16 v{V_ACC+8*j+2*d+1}, v{r+i}, v{T0}')
    e('s_waitcnt vmcnt(3)')
    wq_consume(WA,XA)
    e(f's_cmp_le_u32 s{S_W}, 3'); e('s_cbranch_scc0 L_noq2b')
    wq_consume(WB,XB)
    e('L_noq2b:')
    stamp('q_acc')
    QG=V_T+4
    reduce24(QG)
    e(f'v_lshlrev_b32 v{T1}, 4, v{V_L}')
    e(f's_lshl_b32 s{S_T0}, s{S_W}, 10'); e(f'v_add_u32 v{T0}, s{S_T0}, v{T1}')
    e(f'ds_write_b128 v{T0}, v[{QG}:{QG+3}] offset:{L_OP}')
    if early_b0:
        e(f'v_mov_b32 v{T2}, 0'); e(f'v_mov_b32 v{T3}, 1')
        e('s_waitcnt lgkmcnt(0)')
        setexec(1)
        e(f'ds_add_u32 v{T2}, v{T3} offset:{L_C2}')
        setexec(ALL)
        e(f's_add_u32 s{S_TAG}, s{S_TAG}, 0x9e3779b9')
        s1.issue('K',1,npace)
    else:
        s1.issue('K',1,(npace+3) if burst>1 else npace)
        e('s_waitcnt lgkmcnt(0)')
        e(f's_add_u32 s{S_TAG}, s{S_TAG}, 0x9e3779b9')
        e('s_barrier')
    if tlbw:
        c('address-translation warm-up: one dword per later-needed region (V rounds, wo rows, hand-off boxes); values unused')
        e(f's_cmp_eq_u32 s{S_W}, 7'); e('s_cbranch_scc0 L_notlb')
        e(f'v_and_b32 v{T0}, 15, v{V_L}'); e(f'v_mul_u32_u24 v{T0}, {64*3072}, v{T0}')
        e(f'buffer_load_dword v{V_ACC+12}, v{T0}, s[{SRD_V}:{SRD_V+3}], s{S_KOFF} offen')
        e(f'buffer_load_dword v{V_ACC+13}, v{T0}, s[{SRD_K}:{SRD_K+3}], s{S_KOFF} offen')
        srd(SRD_W,12,6144*640*2)
        e(f's_mul_i32 s{S_WSO}, s{S_H}, {192*1280}')
        e(f'v_and_b32 v{T0}, 3, v{V_L}'); e(f'v_lshlrev_b32 v{T0}, 16, v{T0}')
        e(f'buffer_load_dword v{V_ACC+14}, v{T0}, s[{SRD_W}:{SRD_W+3}], s{S_WSO} offen')
        e(f'v_and_b32 v{T0}, 15, v{V_L}'); e(f'v_lshlrev_b32 v{T0}, 16, v{T0}')
        e(f'buffer_load_dword v{V_ACC+15}, v{T0}, {WSR}, 0 offen sc1')
        e('L_notlb:')
    def q_wait():
        c('q is written by wave 0 long before this point')
        e(f'v_mov_b32 v{T0}, 0')
        e(f's_mov_b32 s{S_CNT}, {spin}')
        e('L_qw:')
        e(f'ds_read_b32 v{T1}, v{T0} offset:{L_F}')
        e('s_waitcnt lgkmcnt(0)')
        e(f'v_cmp_eq_u32 vcc, 0, v{T1}')
        e('s_cbranch_vccz L_qwok')
        spin_end('L_qw')
        e('L_qwok:')
    stream_body(s1,False,2,None,q_wait)
    e('L_tail:')
    OG=V_T+4
    reduce24(OG)
    e(f'ds_write_b128 v{V_TA}, v[{OG}:{OG+3}] offset:{L_OP}')
    e('s_waitcnt vmcnt(0) lgkmcnt(0)')
    e('s_barrier')
    stamp('bar2')
    e(f's_cmp_ge_u32 s{S_W}, 5'); e('s_cbranch_scc1 L_done_st')
    WF=V_RING+96
    OFA=V_ACC+2; OB2A=V_ACC+3; DD=V_RING+140
    S_O2B=42; S_O2=43; S_ZM=16
    def wo_frag_addr():
        e(f'v_lshrrev_b32 v{T0}, 4, v{V_L}'); e(f'v_lshlrev_b32 v{T0}, 3, v{T0}')
        e(f'v_bfe_u32 v{T2}, v{V_L}, 2, 2'); e(f'v_add_u32 v{T0}, v{T0}, v{T2}')
        e(f'v_mul_u32_u24 v{T0}, 160, v{T0}')
        e(f'v_and_b32 v{T2}, 3, v{V_L}'); e(f'v_lshl_add_u32 v{T0}, v{T2}, 3, v{T0}')
        e(f's_lshl_b32 s{S_T3}, s{S_W}, 5'); e(f'v_add_u32 v{T0}, s{S_T3}, v{T0}')
    def wo_frags():
        for u in range(6):
            for z in range(2):
                e(f'ds_read_b64_tr_b16 v[{WF+4*u+2*z}:{WF+4*u+2*z+1}], v{T0} offset:{L_WO+(32*u+4*z)*160}')
    def proj_setup():
        e(f'v_lshrrev_b32 v{OFA}, 4, v{V_L}'); e(f'v_lshlrev_b32 v{OFA}, 4, v{OFA}')
        for i in range(4): e(f'v_mov_b32 v{DD+i}, 0')
        e(f's_mul_i32 s{S_O2B}, s{S_S}, 5'); e(f's_add_u32 s{S_O2B}, s{S_O2B}, s{S_W}'); e(f's_lshl_b32 s{S_O2B}, s{S_O2B}, 12'); e(f's_add_u32 s{S_O2B}, s{S_O2B}, {WS_OB2}')
        e(f's_lshl_b32 s{S_O2}, s{S_H}, 7'); e(f's_add_u32 s{S_O2}, s{S_O2}, s{S_O2B}')
        e(f'v_and_b32 v{T2}, 1, v{V_L}'); e(f'v_lshlrev_b32 v{OB2A}, 1, v{OFA}'); e(f'v_lshl_add_u32 v{OB2A}, v{T2}, 4, v{OB2A}')
        e(f'v_cmp_eq_u32 s[{S_ZM}:{S_ZM+1}], 1, v{T2}')
        e(f'v_mov_b32 v{DD+6}, s{S_TAG}'); e(f'v_mov_b32 v{DD+7}, s{S_TAG}')
    e(f's_cmp_eq_u32 s{S_W}, 0'); e('s_cbranch_scc1 L_w0tail')
    wo_frag_addr(); wo_frags(); proj_setup()
    e('s_branch L_bar3')
    e('L_w0tail:')
    RO=V_RING
    T1=V_T+1
    for w in range(NW): e(f'ds_read_b128 v[{RO+4*w}:{RO+4*w+3}], v{V_TL} offset:{L_OP+1024*w}')
    e(f's_lshl_b32 s{S_T2}, s{S_B}, 10'); e(f's_add_u32 s{S_T2}, s{S_T2}, {WS_OB1}')
    e(f's_lshl_b32 s{S_T0}, s{S_H}, 13'); e(f's_add_u32 s{S_T0}, s{S_T0}, {WS_OB1}'); e(f's_add_u32 s{S_T1}, s{S_T0}, 4096')
    if poll1=='dual':
        e(f's_add_u32 s{S_T3}, s{S_T2}, {WS_OB1L-WS_OB1}')
        e(f's_add_u32 s{S_QB}, s{S_T0}, {WS_OB1L-WS_OB1}'); e(f's_add_u32 s{S_QB+1}, s{S_QB}, 4096')
    OA=V_T+4
    lgkm(4)
    for i in range(3): e(f'v_mul_f32 v{OA+i}, s{S_F}, v{RO+i}')
    for w in range(1,4):
        for i in range(3): e(f'v_fmac_f32 v{OA+i}, s{S_F+w}, v{RO+4*w+i}')
    lgkm(0)
    for i in range(3): e(f'v_mul_f32 v{RO+i}, s{S_F+4}, v{RO+16+i}')
    for w in range(5,8):
        for i in range(3): e(f'v_fmac_f32 v{RO+i}, s{S_F+w}, v{RO+4*w+i}')
    for i in range(3): e(f'v_add_f32 v{OA+i}, v{OA+i}, v{RO+i}')
    if poll1=='dual':
        c('two copies: a plain store (served by the shared L2 when the splits of a head sit on one die) and a write-through store')
        e(f'buffer_store_dwordx4 v[{OA}:{OA+3}], v{V_TL}, {WSR}, s{S_T3} offen')
    e(f'buffer_store_dwordx4 v[{OA}:{OA+3}], v{V_TL}, {WSR}, s{S_T2} offen sc1')
    stamp('pub1')
    RB=V_RING
    if poll1=='dual':
        for s_ in range(8): box_load(RB,s_,S_QB,S_QB+1,V_TL)
    else:
        for s_ in range(8): box_load(RB,s_,S_T0,S_T1,V_TL)
    e(f's_mov_b32 s{S_CNT}, {spin}')
    wo_frag_addr(); wo_frags()
    lds_addr_bf16x3(V_ACC,V_ACC+1,T2)
    proj_setup()
    if poll1=='sel':
        PAIRS=[6,8,10,12,16,20,24,22]
        c('poll: boxes whose tag has not been seen yet are fetched again')
        e('s_branch L_poll1c')
        e('L_poll1:')
        for s_ in range(8):
            e(f's_bitcmp1_b32 s{S_MASK}, {s_}'); e(f's_cbranch_scc0 L_p1i{s_}')
            box_load(RB,s_,S_T0,S_T1,V_TL)
            e(f'L_p1i{s_}:')
        e('L_poll1c:')
        e('s_waitcnt vmcnt(0)')
        for s_ in range(8): e(f'v_cmp_ne_u32 s[{PAIRS[s_]}:{PAIRS[s_]+1}], s{S_TAG}, v{RB+4*s_+3}')
        e(f's_mov_b32 s{S_MASK}, 0')
        for s_ in range(7,-1,-1):
            e(f's_cmp_lg_u64 s[{PAIRS[s_]}:{PAIRS[s_]+1}], 0'); e(f's_addc_u32 s{S_MASK}, s{S_MASK}, s{S_MASK}')
        e(f's_cmp_eq_u32 s{S_MASK}, 0'); e('s_cbranch_scc1 L_got1')
        spin_end('L_poll1')
    else:
        e('s_branch L_poll1c')
        e('L_poll1:')
        if poll1=='dual':
            e(f's_and_b32 s{S_T2}, s{S_CNT}, {dualk-1}'); e(f's_cmp_eq_u32 s{S_T2}, 0'); e('s_cbranch_scc1 L_poll1g')
            for s_ in range(8): box_load(RB,s_,S_QB,S_QB+1,V_TL)
            e('s_branch L_poll1c')
            e('L_poll1g:')
        for s_ in range(8): box_load(RB,s_,S_T0,S_T1,V_TL)
        e('L_poll1c:')
        e('s_waitcnt vmcnt(0)')
        check_tags([RB+4*s_+3 for s_ in range(8)],T0,T2,T3)
        e('s_cbranch_vccz L_got1')
        spin_end('L_poll1',sleep1)
    e('L_got1:')
    stamp('got1')
    for step in (4,2):
        for s_ in range(step):
            for i in range(3): e(f'v_add_f32 v{RB+4*s_+i}, v{RB+4*s_+i}, v{RB+4*(s_+step)+i}')
    for i in range(3): e(f'v_add_f32 v{OA+i}, v{RB+i}, v{RB+4+i}')
    lds_put_bf16x3(OA,L_OF,V_ACC,V_ACC+1,T0,T2,T3)
    e('L_bar3:')
    OFR=V_RING
    e('s_waitcnt lgkmcnt(0)')
    e('s_barrier')
    stamp('bar3')
    for u in range(6): e(f'ds_read_b128 v[{OFR+4*u}:{OFR+4*u+3}], v{OFA} offset:{L_OF+64*u}')
    for u in range(6):
        lgkm(5-u)
        e(f'v_mfma_f32_16x16x32_bf16 v[{DD}:{DD+3}], v[{WF+4*u}:{WF+4*u+3}], v[{OFR+4*u}:{OFR+4*u+3}], v[{DD}:{DD+3}]')
    PG=DD+4
    ZM=f's[{S_ZM}:{S_ZM+1}]'
    setexec(0x0003000300030003)
    e('s_nop 5')
    e(f'v_cndmask_b32 v{PG}, v{DD}, v{DD+2}, {ZM}'); e(f'v_cndmask_b32 v{PG+1}, v{DD+1}, v{DD+3}, {ZM}')
    e(f'buffer_store_dwordx4 v[{PG}:{PG+3}], v{OB2A}, {WSR}, s{S_O2} offen sc1')
    setexec(ALL)
    stamp('pub2')
    if fin=='h0':
        e(f's_cmp_eq_u32 s{S_H}, {fin_h}'); e('s_cbranch_scc0 L_done_st')
    else:
        c('column slice j is finalised by split j of head 4j+fin (one finalising workgroup per die under round-robin placement)')
        e(f's_lshl_b32 s{S_T0}, s{S_S}, 2'); e(f's_add_u32 s{S_T0}, s{S_T0}, {fin_h&3}'); e(f's_cmp_eq_u32 s{S_H}, s{S_T0}'); e('s_cbranch_scc0 L_done_st')
    R2=V_RING+48
    def p2_loads(base):
        for i in range(4): e(f'buffer_load_dwordx4 v[{base+4*i}:{base+4*i+3}], v{V_TL}, {WSR}, s{S_O2B} offen offset:{1024*i} sc1')
    NS=int(poll2p) if poll2p else 1
    if poll2p is True: NS=2
    for k in range(NS): p2_loads(R2+16*k)
    srd(SRD_A,14,1280)
    e(f's_mov_b32 s{S_CNT}, {spin}')
    e(f'v_lshlrev_b32 v{OFA}, 2, v{V_L}')
    e(f's_mul_i32 s{S_T0}, s{S_S}, 160'); e(f's_lshl_b32 s{S_T1}, s{S_W}, 5'); e(f's_add_u32 s{S_T0}, s{S_T0}, s{S_T1}')
    R3=R2+16*NS
    c(f'{NS} rounds of polls in flight; the first complete set is used')
    e('L_poll2:')
    for k in range(NS):
        e(f's_waitcnt vmcnt({4*(NS-1)})')
        check_tags([R2+16*k+4*i+3 for i in range(4)],T0,T2,T3)
        e(f's_cbranch_vccz L_got2_{k}')
        if sleep2: e(f's_sleep {sleep2}')
        p2_loads(R2+16*k)
    spin_end('L_poll2')
    for k in range(NS):
        e(f'L_got2_{k}:')
        if k==0: stamp('got2')
        Rk=R2+16*k
        for i in range(2): e(f'v_add_f32 v{Rk+i}, v{Rk+i}, v{Rk+4+i}')
        for i in range(2): e(f'v_add_f32 v{Rk+8+i}, v{Rk+8+i}, v{Rk+12+i}')
        for i in range(2): e(f'v_add_f32 v{R3+i}, v{Rk+i}, v{Rk+8+i}')
        if k<NS-1: e('s_branch L_got2c')
    e('L_got2c:')
    c('every workgroup has read the epoch word by now: store the tag as the next epoch')
    e(f's_or_b32 s{S_T1}, s{S_S}, s{S_W}'); e(f's_cmp_eq_u32 s{S_T1}, 0'); e('s_cbranch_scc0 L_noepoch')
    e(f'v_mov_b32 v{T3}, s{S_TAG}')
    setexec(1)
    e(f'buffer_store_dword v{T3}, off, {WSR}, 0 offset:{WS_EPOCH} sc1')
    setexec(ALL)
    e('L_noepoch:')
    e('s_nop 1')
    for i in range(2): e(f'v_add_f32_dpp v{R3+i}, v{R3+i}, v{R3+i} row_ror:8 row_mask:0xf bank_mask:0xf')
    for sw in ('v_permlane16_swap_b32','v_permlane32_swap_b32'):
        e(f'v_mov_b32 v{R3+2}, v{R3}'); e(f'v_mov_b32 v{R3+3}, v{R3+1}'); e('s_nop 1')
        e(f'{sw} v{R3}, v{R3+2}'); e(f'{sw} v{R3+1}, v{R3+3}')
        e(f'v_add_f32 v{R3}, v{R3}, v{R3+2}'); e(f'v_add_f32 v{R3+1}, v{R3+1}, v{R3+3}')
    e(f'v_cvt_pk_bf16_f32 v{T2}, v{R3}, v{R3+1}')
    setexec(0xff)
    e(f'buffer_store_dword v{T2}, v{OFA}, s[{SRD_A}:{SRD_A+3}], s{S_T0} offen')
    setexec(ALL)
    stamp('out')
    e('L_done_st:')
    if stamps:
        e('s_waitcnt vmcnt(0)')
        stamp('end')
        e('s_waitcnt lgkmcnt(0)')
        e(f's_getreg_b32 s{S_T0}, hwreg(HW_REG_XCC_ID)')
        e(f'v_mov_b32 v{V_T}, 0')
        for i in range(len(stamp_names)): e(f'v_writelane_b32 v{V_T}, s{S_ST+2*i}, {i}')
        e(f'v_writelane_b32 v{V_T}, s{S_T0}, 31')
        e(f's_mul_i32 s{S_T0}, s{S_WG}, {NW}'); e(f's_add_u32 s{S_T0}, s{S_T0}, s{S_W}'); e(f's_lshl_b32 s{S_T0}, s{S_T0}, 7'); e(f's_add_u32 s{S_T0}, s{S_T0}, {STAMP_OFF}')
        e(f'v_lshlrev_b32 v{V_T+1}, 2, v{V_L}'); e(f'v_add_u32 v{V_T+1}, s{S_T0}, v{V_T+1}')
        setexec(0xffffffff)
        e(f'global_store_dword v{V_T+1}, v{V_T}, s[18:19]')
    e('L_done:')
    e('s_endpgm')
    e('L_w0:')
    GR=ring(13)
    s0=Stream(G,64*3072); s0.nk=G
    if early_b0:
        e(f'v_mov_b32 v{T2}, 0'); e(f'v_mov_b32 v{T3}, 0')
        e(f'ds_write_b64 v{T2}, v[{T2}:{T3}] offset:{L_F}')
        e(f'ds_write_b32 v{T2}, v{T3} offset:{L_C2}')
        s0.issue('K',0,None)
        e('s_waitcnt lgkmcnt(0)')
        e('s_barrier')
        late_setup()
        for g in range(1,n0): s0.issue('K',g,w0pace)
    else:
        for g in range(n0):
            s0.issue('K',g,w0pace)
            if g==0: late_setup()
        e(f'v_mov_b32 v{T2}, 0'); e(f'v_mov_b32 v{T3}, 0')
        e(f'ds_write_b64 v{T2}, v[{T2}:{T3}] offset:{L_F}')
        if boost: e(f'ds_write_b32 v{T2}, v{T3} offset:{L_B}')
    e(f'v_lshlrev_b32 v{T1}, 4, v{V_L}')
    e(f'v_mov_b32 v{V_QO}, v{T1}')
    lds_addr_bf16x3(V_ACC,V_ACC+1,T0)
    e(f's_lshl_b32 s{S_T2}, s{S_B}, 10'); e(f's_add_u32 s{S_T2}, s{S_T2}, {WS_QP}')
    e(f's_lshl_b32 s{S_QB}, s{S_H}, 13'); e(f's_add_u32 s{S_QB}, s{S_QB}, {WS_QP}'); e(f's_add_u32 s{S_QB+1}, s{S_QB}, 4096')
    e('s_waitcnt lgkmcnt(0)')
    e(f's_add_u32 s{S_TAG}, s{S_TAG}, 0x9e3779b9')
    if early_b0:
        e(f'v_mov_b32 v{T2}, 0')
        e(f's_mov_b32 s{S_CNT}, {spin}')
        e('L_c7:')
        e(f'ds_read_b32 v{T3}, v{T2} offset:{L_C2}')
        e('s_waitcnt lgkmcnt(0)')
        e(f'v_cmp_gt_u32 vcc, 7, v{T3}')
        e('s_cbranch_vccz L_c7ok')
        spin_end('L_c7')
        e('L_c7ok:')
    else:
        e('s_barrier')
    c('sum the 7 wave partials, publish the partial q of this split')
    for w in range(1,NW): e(f'ds_read_b128 v[{GR+4*w}:{GR+4*w+3}], v{T1} offset:{L_OP+1024*w}')
    e(f'v_mov_b32 v{QG+3}, s{S_TAG}')
    e('s_waitcnt lgkmcnt(0)')
    for i in range(3):
        e(f'v_add_f32 v{GR+4+i}, v{GR+4+i}, v{GR+20+i}')
        e(f'v_add_f32 v{GR+8+i}, v{GR+8+i}, v{GR+24+i}')
        e(f'v_add_f32 v{GR+12+i}, v{GR+12+i}, v{GR+28+i}')
    for i in range(3):
        e(f'v_add_f32 v{GR+4+i}, v{GR+4+i}, v{GR+16+i}')
        e(f'v_add_f32 v{GR+8+i}, v{GR+8+i}, v{GR+12+i}')
    for i in range(3): e(f'v_add_f32 v{QG+i}, v{GR+4+i}, v{GR+8+i}')
    e(f'buffer_store_dwordx4 v[{QG}:{QG+3}], v{T1}, {WSR}, s{S_T2} offen sc1')
    stamp('q_pub')
    e(f's_mov_b32 s{S_QS}, 0')
    def q_gather():
        for s_ in range(8): box_load(GR,s_,S_QB,S_QB+1,V_QO)
    def q_finish():
        for step in (4,2,1):
            for s_ in range(step):
                for i in range(3): e(f'v_add_f32 v{GR+4*s_+i}, v{GR+4*s_+i}, v{GR+4*(s_+step)+i}')
        lds_put_bf16x3(GR,L_Q,V_ACC,V_ACC+1,T0,T2,T3)
        e(f'v_mov_b32 v{T2}, 0'); e(f'v_mov_b32 v{T3}, 1')
        e('s_waitcnt lgkmcnt(0)')
        e(f'ds_write_b32 v{T2}, v{T3} offset:{L_F}')
    def kstep(when,g):
        if when=='post':
            if g==q_first:
                c('first gather of the 8 partials (normally the only one)')
                q_gather()
                e(f's_mov_b32 s{S_QS}, 1')
            elif q_first<g<gq:
                e(f's_cmp_eq_u32 s{S_QS}, 2'); e(f's_cbranch_scc1 L_qs{g}')
                e(f's_getpc_b64 s[{S_RET}:{S_RET+1}]')
                e('s_branch L_qstep')
                e(f'L_qs{g}:')
    def q_block():
        c('the exchange must be complete here')
        e(f's_cmp_eq_u32 s{S_QS}, 2'); e('s_cbranch_scc1 L_qfin')
        e(f's_mov_b32 s{S_CNT}, {spin}')
        e('L_qblock:')
        q_gather()
        e('s_waitcnt vmcnt(0)')
        check_tags([GR+4*s_+3 for s_ in range(8)],T0,T2,T3)
        e('s_cbranch_vccz L_qblock_ok')
        spin_end('L_qblock')
        e('L_qblock_ok:')
        q_finish()
        e('L_qfin:')
        e('s_waitcnt lgkmcnt(0)')
        stamp('q_done')
    assert q_first>=n0 and q_first+1<gq<=12
    stream_body(s0,True,n0,kstep,q_block)
    e('s_branch L_tail')
    c('exchange step (called from the K prefetch of wave 0): state 0 = issue the gather, 1 = check it')
    e('L_qstep:')
    e(f's_add_u32 s{S_RET}, s{S_RET}, 4'); e(f's_addc_u32 s{S_RET+1}, s{S_RET+1}, 0')
    e('s_waitcnt vmcnt(3)')
    check_tags([GR+4*s_+3 for s_ in range(8)],T0,T2,T3)
    e('s_cbranch_vccnz L_qissue')
    q_finish()
    e(f's_mov_b32 s{S_QS}, 2')
    e(f's_setpc_b64 s[{S_RET}:{S_RET+1}]')
    e('L_qissue:')
    q_gather()
    e(f's_mov_b32 s{S_QS}, 1')
    e(f's_setpc_b64 s[{S_RET}:{S_RET+1}]')
    e('.section .rodata,"a"'); e('.p2align 6'); e(f'.amdhsa_kernel {KN}')
    e(f'  .amdhsa_next_free_vgpr {NV}'); e('  .amdhsa_next_free_sgpr 102'); e(f'  .amdhsa_accum_offset {(NV+3)//4*4}')
    if denorm: e('  .amdhsa_float_denorm_mode_32 3')
    e('  .amdhsa_group_segment_fixed_size 0'); e('  .amdhsa_kernarg_size 64'); e('  .amdhsa_user_sgpr_count 2'); e('  .amdhsa_user_sgpr_kernarg_segment_ptr 1'); e('  .amdhsa_system_sgpr_workgroup_id_x 1')
    e('.end_amdhsa_kernel')
    return '\n'.join(o)+'\n', L_END, stamp_names

if __name__=='__main__':
    from mk import build
    cfgs=eval(open(sys.argv[1]).read())
    iters=int(sys.argv[2]) if len(sys.argv)>2 else 20
    show=sys.argv[3] if len(sys.argv)>3 else 'all'
    files=['bench/bench2','bench/run.sh','bench/tl2.py']
    specs=[]; names=None
    for name,kw in cfgs.items():
        s,lds,names=gen(**kw)
        open(f'{name}.s','w').write(s); build(f'{name}.s'); files.append(f'bench/{name}.co'); specs.append(f'{name}:{lds}')
    lines=['cd bench', f'./bench2 {iters} 21 {256*8*32} {STAMP_OFF} '+' '.join(specs), f'python3 tl2.py "{",".join(names)}" {show} '+' '.join(cfgs)]
    open('run.sh','w').write('\n'.join(lines)+'\n')
    print(json.dumps(files))
```
